```python
import torch

def _softmax(x, axis=-1):
    return torch.softmax(x, dim=axis)
def _gelu(x):
    return torch.nn.functional.gelu(x, approximate="tanh")
def _silu(x):
    return torch.nn.functional.silu(x)
def _sigmoid(x):
    return torch.sigmoid(x)
def _layernorm(x, axis=-1, eps=1e-5):
    m = x.mean(dim=axis, keepdim=True)
    v = x.var(dim=axis, keepdim=True, unbiased=False)
    return (x - m) / torch.sqrt(v + eps)
def _scatter_add(tgt, idx, src, axis=0):
    return tgt.clone().index_add_(axis, idx, src)
def _segment_sum(src, seg, n):
    out = torch.zeros((n,) + src.shape[1:], dtype=src.dtype)
    return out.index_add_(0, seg, src)
def _pad(x, pw):
    flat = tuple(v for pair in reversed(pw) for v in pair)
    return torch.nn.functional.pad(x, flat)

kernel_name = 'interleave_layers__spectral_fnet__dense_activation_squared_relu__prompt'

def setup_inputs():

    _w = (lambda a: (lambda t: t.to(torch.bfloat16) if t.is_floating_point() else t)(torch.as_tensor(a)))
    def _A_setup():
        B, S, D = 1, 2048, 640
        ns = torch.arange(S)[:, None] * torch.arange(S)[None, :]
        nd = torch.arange(D)[:, None] * torch.arange(D)[None, :]
        Ws_re = torch.cos(-2.0 * torch.pi * ns / S).to(float)
        Ws_im = torch.sin(-2.0 * torch.pi * ns / S).to(float)
        Wd_re = torch.cos(-2.0 * torch.pi * nd / D).to(float)
        Wd_im = torch.sin(-2.0 * torch.pi * nd / D).to(float)
        return {
            "x": _w((lambda *s: torch.randn(*s, dtype=torch.bfloat16) * 0.05)(B, S, D)),
            "dft_seq_re": _w(Ws_re),
            "dft_seq_im": _w(Ws_im),
            "dft_hid_re": _w(Wd_re),
            "dft_hid_im": _w(Wd_im),
        }
    _A_in = _A_setup()

    def _B_setup():
        B, S, D, F = 1, 2048, 640, 1728
        return {
            "x": _w((lambda *s: torch.randn(*s, dtype=torch.bfloat16) * 0.05)(B, S, D)),
            "w1": _w((lambda *s: torch.randn(*s, dtype=torch.bfloat16) * 0.4)(D, F)),
            "b1": _w((lambda *s: torch.randn(*s, dtype=torch.bfloat16) * 0.4)(F)),
            "w2": _w((lambda *s: torch.randn(*s, dtype=torch.bfloat16) * 0.4)(F, D)),
            "b2": _w((lambda *s: torch.randn(*s, dtype=torch.bfloat16) * 0.4)(D)),
        }
    _B_in = _B_setup()

    return {
        "A_x": _A_in["x"],
        "A_dft_seq_re": _A_in["dft_seq_re"],
        "A_dft_seq_im": _A_in["dft_seq_im"],
        "A_dft_hid_re": _A_in["dft_hid_re"],
        "A_dft_hid_im": _A_in["dft_hid_im"],
        "B_x": _B_in["x"],
        "B_w1": _B_in["w1"],
        "B_b1": _B_in["b1"],
        "B_w2": _B_in["w2"],
        "B_b2": _B_in["b2"],
    }

def reference(A_x, A_dft_seq_re, A_dft_seq_im, A_dft_hid_re, A_dft_hid_im, B_x, B_w1, B_b1, B_w2, B_b2):
    def _A_ref(x, dft_seq_re, dft_seq_im, dft_hid_re, dft_hid_im):
        a = torch.einsum("bsd,ed->bse", x, dft_hid_re)
        b = torch.einsum("bsd,ed->bse", x, dft_hid_im)
        y = torch.einsum("ts,bse->bte", dft_seq_re, a) - torch.einsum("ts,bse->bte", dft_seq_im, b)
        return y

    def _B_ref(x, w1, b1, w2, b2):
        h = torch.einsum("bsd,df->bsf", x, w1) + b1
        zero = torch.zeros_like(h)
        r = torch.where(h > zero, h, zero)
        h = r * r
        out = torch.einsum("bsf,fd->bsd", h, w2) + b2
        return out

    x = A_x
    x = x + _A_ref(_layernorm(x, axis=-1), A_dft_seq_re, A_dft_seq_im, A_dft_hid_re, A_dft_hid_im)
    x = x + _B_ref(_layernorm(x, axis=-1), B_w1, B_b1, B_w2, B_b2)
    x = x + _A_ref(_layernorm(x, axis=-1), A_dft_seq_re, A_dft_seq_im, A_dft_hid_re, A_dft_hid_im)
    x = x + _B_ref(_layernorm(x, axis=-1), B_w1, B_b1, B_w2, B_b2)
    return x
```

```python
import re


def v(i, n=1):
    return f"v{i}" if n == 1 else f"v[{i}:{i + n - 1}]"


def a(i, n=1):
    return f"a{i}" if n == 1 else f"a[{i}:{i + n - 1}]"


def s(i, n=1):
    return f"s{i}" if n == 1 else f"s[{i}:{i + n - 1}]"


def r(i, n=1):
    if i >= 256:
        return a(i - 256, n)
    assert i + n <= 256, (i, n)
    return v(i, n)


TRANS = ("v_exp_", "v_log_", "v_rcp_", "v_rsq_", "v_sqrt_", "v_sin_", "v_cos_")
_REG = re.compile(r"^(-|abs\()?([vas])(?:(\d+)|\[(\d+):(\d+)\])\)?$")


def regs_of(op):
    op = op.strip()
    if op in ("vcc", "exec"):
        return {op}
    if op in ("vcc_lo", "vcc_hi"):
        return {"vcc"}
    if op in ("exec_lo", "exec_hi"):
        return {"exec"}
    if op == "m0":
        return {"m0"}
    op = op.replace("|", "")
    m = _REG.match(op)
    if not m:
        return set()
    k = m.group(2)
    if m.group(3) is not None:
        return {k + m.group(3)}
    return {k + str(i) for i in range(int(m.group(4)), int(m.group(5)) + 1)}


class Ins:
    __slots__ = ("text", "mn", "ops", "w", "rd", "cls", "passes", "srca", "srcb", "srcc", "label", "target",
                 "states", "dpp", "storedata", "wide")

    def __init__(self, text):
        self.text = text
        t = text.split(";")[0].strip()
        self.label = None
        self.target = None
        self.w = set()
        self.rd = set()
        self.cls = "other"
        self.passes = 0
        self.srca = self.srcb = self.srcc = set()
        self.states = 1
        self.dpp = False
        self.storedata = set()
        self.wide = False
        self.mn = ""
        self.ops = []
        if not t:
            self.cls = "empty"
            self.states = 0
            return
        if t.endswith(":"):
            self.label = t[:-1]
            self.cls = "label"
            self.states = 0
            return
        if t.startswith("."):
            self.cls = "directive"
            self.states = 0
            return
        parts = t.split(None, 1)
        mn = self.mn = parts[0]
        rest = parts[1] if len(parts) > 1 else ""
        ops = []
        depth = 0
        cur = ""
        for ch in rest:
            if ch in "[(":
                depth += 1
            if ch in "])":
                depth -= 1
            if ch == "," and depth == 0:
                ops.append(cur.strip())
                cur = ""
            else:
                cur += ch
        if cur.strip():
            ops.append(cur.strip())
        mods = ""
        if ops:
            last = ops[-1].split(None, 1)
            if len(last) > 1 and not mn.startswith("s_waitcnt"):
                ops[-1] = last[0]
                mods = last[1]
        self.ops = ops
        R = [regs_of(o) for o in ops]
        if mn.startswith("v_mfma"):
            self.cls = "mfma"
            if "32x32x16" in mn or "32x32x8" in mn:
                self.passes = 8
            elif "16x16x32" in mn or "16x16x16" in mn:
                self.passes = 4
            else:
                raise ValueError("unknown mfma " + mn)
            self.w = R[0]
            self.srca, self.srcb, self.srcc = R[1], R[2], R[3]
            self.rd = R[1] | R[2] | R[3] | {"exec"}
        elif mn.startswith("v_"):
            self.cls = "trans" if mn.startswith(TRANS) else "valu"
            if mn == "v_nop":
                return
            self.dpp = "_dpp" in mn or "row_" in mods or "quad_perm" in mods
            if mn.startswith("v_cmpx"):
                self.w = R[0] | {"exec"}
                self.rd = set().union(*R[1:])
            elif mn.startswith(("v_add_co", "v_sub_co", "v_subrev_co", "v_addc_co", "v_subb_co", "v_mad_u64", "v_div_scale")):
                self.w = R[0] | R[1]
                self.rd = set().union(*R[2:])
            elif mn.startswith("v_permlane") and "swap" in mn:
                self.w = R[0] | R[1]
                self.rd = R[0] | R[1]
            elif mn.startswith("v_swap"):
                self.w = R[0] | R[1]
                self.rd = R[0] | R[1]
            else:
                self.w = R[0]
                self.rd = set().union(*R[1:]) if len(R) > 1 else set()
                if mn.startswith(("v_fmac", "v_dot2c", "v_pk_fmac", "v_writelane")) or self.dpp or "_sdwa" in mn:
                    self.rd |= R[0]
            if mn.startswith("v_div_fmas"):
                self.rd |= {"vcc"}
            self.rd |= {"exec"}
        elif mn.startswith(("buffer_", "global_", "flat_")):
            self.cls = "vmem"
            lds = " lds" in (" " + mods) or "load_lds" in mn
            if mn in ("buffer_inv", "buffer_wbl2"):
                return
            if lds:
                self.rd = set().union(*R) | {"m0"}
            elif "load" in mn:
                self.w = R[0]
                self.rd = set().union(*R[1:])
            elif "atomic" in mn:
                self.rd = set().union(*R)
                if "sc0" in mods:
                    self.w = R[0]
            else:
                self.rd = set().union(*R)
                self.storedata = R[0] if mn.startswith("buffer_") else R[1]
                self.wide = mn.endswith(("x3", "x4"))
        elif mn.startswith("ds_"):
            self.cls = "ds"
            if mn.startswith(("ds_read", "ds_bpermute", "ds_permute", "ds_swizzle")) or "_rtn" in mn:
                self.w = R[0]
                self.rd = set().union(*R[1:])
            else:
                self.rd = set().union(*R)
        elif mn.startswith("s_"):
            self.cls = "salu"
            if mn == "s_nop":
                self.states = int(ops[0], 0) + 1
            elif mn.startswith(("s_load", "s_buffer_load", "s_memtime", "s_memrealtime")):
                self.cls = "smem"
                self.w = R[0]
                self.rd = set().union(*R[1:]) if len(R) > 1 else set()
            elif mn.startswith(("s_cbranch", "s_branch")):
                self.cls = "branch"
                self.target = ops[0]
            elif mn.startswith(("s_cmp", "s_bitcmp")):
                self.rd = set().union(*R)
            elif mn.startswith(("s_waitcnt", "s_barrier", "s_endpgm", "s_setprio", "s_sleep", "s_sethalt")):
                pass
            elif "saveexec" in mn:
                self.w = R[0] | {"exec"}
                self.rd = R[1] | {"exec"}
            else:
                self.w = R[0] if R else set()
                self.rd = set().union(*R[1:]) if len(R) > 1 else set()
                if mn.startswith(("s_addk", "s_mulk", "s_cmov", "s_bitset")):
                    self.rd |= R[0]
        else:
            raise ValueError("cannot classify: " + text)


def _vg(x):
    return {q for q in x if q[0] in "va" and q not in ("vcc",)}


def _sg(x):
    return {q for q in x if q[0] == "s" or q == "vcc"}


def need_states(p, c):
    n = 0
    pvalu = p.cls in ("valu", "trans")
    cvalu = c.cls in ("valu", "trans")
    if pvalu:
        pw_v, pw_s = _vg(p.w), _sg(p.w)
        if c.cls == "mfma" and pw_v & (c.srca | c.srcb | c.srcc):
            n = max(n, 2)
        if c.cls == "mfma" and "exec" in p.w:
            n = max(n, 4)
        if c.cls == "vmem" and pw_s & c.rd:
            n = max(n, 5)
        if cvalu:
            if c.dpp and pw_v & c.rd:
                n = max(n, 2)
            if c.dpp and "exec" in p.w:
                n = max(n, 5)
            if pw_s & c.rd:
                n = max(n, 4 if c.mn.startswith(("v_readlane", "v_writelane", "v_div_fmas")) else 2)
            if c.mn.startswith(("v_readlane", "v_readfirstlane")) and pw_v & c.rd:
                n = max(n, 1)
            if c.mn.startswith(("v_readlane", "v_readfirstlane", "v_writelane", "v_permlane")) and "exec" in p.w:
                n = max(n, 4)
            if c.mn.startswith("v_permlane") and pw_v & c.rd:
                n = max(n, 2)
            if p.cls == "trans" and pw_v & c.rd:
                n = max(n, 1)
            if ("_sdwa" in p.mn or "op_sel" in p.text) and not p.mn.startswith("v_pk_") and pw_v & (c.rd | c.w):
                n = max(n, 1)
        if c.cls in ("salu", "branch", "smem") and pw_s & c.rd:
            n = max(n, 1)
        if c.cls == "branch" and c.mn.startswith("s_cbranch_vcc") and "vcc" in p.w:
            n = max(n, 5)
        if c.cls == "branch" and c.mn.startswith("s_cbranch_exec") and "exec" in p.w:
            n = max(n, 5)
    if p.cls == "vmem" and p.wide and p.storedata & c.w:
        n = max(n, 2)
    if p.cls == "salu" and "m0" in p.w and "m0" in c.rd:
        n = max(n, 1)
    if p.cls == "mfma":
        big = {4: 8, 8: 12}[p.passes]
        if c.cls == "mfma":
            if p.w & (c.srca | c.srcb):
                n = max(n, big)
            if p.w & c.srcc:
                if not (p.w == c.srcc and p.passes == c.passes):
                    n = max(n, big - 2)
            elif p.w & c.w:
                n = max(n, big)
        elif c.cls in ("valu", "trans", "vmem", "ds"):
            if p.w & (c.rd | c.w):
                n = max(n, big)
            if cvalu and p.srcc & c.w:
                n = max(n, {4: 3, 8: 7}[p.passes])
    return n


MAXLOOK = 20


def fix_hazards(lines):
    ins = [Ins(t) for t in lines]
    changed = True
    total = 0
    while changed:
        changed = False
        labels = {x.label: i for i, x in enumerate(ins) if x.label}
        jumps = {}
        for i, x in enumerate(ins):
            if x.target in labels:
                jumps.setdefault(labels[x.target], []).append(i)
        out = []
        for i, c in enumerate(ins):
            if c.states and c.cls not in ("other",) and c.mn != "s_nop":
                short = 0
                stack = [(i - 1, 0, True)]
                seen = set()
                while stack:
                    j, dist, fall = stack.pop()
                    while j >= 0 and dist < MAXLOOK:
                        if (j, dist) in seen:
                            break
                        seen.add((j, dist))
                        p = ins[j]
                        if fall and p.mn in ("s_branch", "s_endpgm"):
                            break
                        fall = True
                        if p.label is not None:
                            for b in jumps.get(j, []):
                                stack.append((b, dist, False))
                        if p.states:
                            short = max(short, need_states(p, c) - dist)
                            dist += p.states
                        j -= 1
                if short > 0:
                    k = short
                    while k > 0:
                        q = min(k, 16)
                        out.append(Ins(f"s_nop {q - 1}"))
                        k -= q
                    total += short
                    changed = True
                    out.append(c)
                    out.extend(ins[i + 1:])
                    break
            out.append(c)
        ins = out
    return [x.text for x in ins], total


def fix_hazards_fast(lines):
    ins = [Ins(t) for t in lines]
    total = 0
    for _ in range(50):
        labels = {x.label: i for i, x in enumerate(ins) if x.label}
        jumps = {}
        for i, x in enumerate(ins):
            if x.target in labels:
                jumps.setdefault(labels[x.target], []).append(i)
        pad = [0] * len(ins)
        any_pad = False
        for i, c in enumerate(ins):
            if not c.states or c.cls == "other" or c.mn == "s_nop":
                continue
            short = 0
            stack = [(i - 1, 0, True)]
            seen = set()
            while stack:
                j, dist, fall = stack.pop()
                while j >= 0 and dist < MAXLOOK:
                    if (j, dist) in seen:
                        break
                    seen.add((j, dist))
                    p = ins[j]
                    if fall and p.mn in ("s_branch", "s_endpgm"):
                        break
                    fall = True
                    if p.label is not None:
                        for b in jumps.get(j, []):
                            stack.append((b, dist, False))
                    if p.states:
                        short = max(short, need_states(p, c) - dist)
                        dist += p.states + pad[j]
                    j -= 1
            if short > 0:
                pad[i] = short
                any_pad = True
                total += short
        if not any_pad:
            return [x.text for x in ins], total
        out = []
        for i, c in enumerate(ins):
            k = pad[i]
            while k > 0:
                q = min(k, 16)
                out.append(Ins(f"s_nop {q - 1}"))
                k -= q
            out.append(c)
        ins = out
    raise RuntimeError("hazard pass did not converge")


class Kernel:
    def __init__(self, name, vgpr=256, agpr=0, sgpr=102, wg_y=False):
        self.name = name
        self.lines = []
        self.vgpr = vgpr
        self.agpr = agpr
        self.sgpr = sgpr
        self.wg_y = wg_y
        self._lab = 0

    def __call__(self, text):
        for t in text.split("\n"):
            t = t.strip()
            if t:
                self.lines.append(t)

    def label(self, stem):
        self._lab += 1
        return f"L_{self.name}_{stem}_{self._lab}"

    def srd(self, d, base, nbytes):
        self(f"s_mov_b32 {s(d)}, {s(base)}")
        self(f"s_and_b32 {s(d + 1)}, {s(base + 1)}, 0xffff")
        self(f"s_mov_b32 {s(d + 2)}, {nbytes}")
        self(f"s_mov_b32 {s(d + 3)}, 0x00020000")

    def srd_off(self, d, base, off, nbytes):
        self(f"s_add_u32 {s(d)}, {s(base)}, {off}")
        self(f"s_addc_u32 {s(d + 1)}, {s(base + 1)}, 0")
        self(f"s_and_b32 {s(d + 1)}, {s(d + 1)}, 0xffff")
        self(f"s_mov_b32 {s(d + 2)}, {nbytes}")
        self(f"s_mov_b32 {s(d + 3)}, 0x00020000")

    def text(self):
        body, n = fix_hazards_fast(self.lines)
        self.nops = n
        out = [f".globl {self.name}", ".p2align 8", f".type {self.name},@function", f"{self.name}:"]
        for t in body:
            out.append(t if t.endswith(":") else "    " + t)
        return "\n".join(out) + "\n"

    def descriptor(self):
        acc = (self.vgpr + 3) // 4 * 4
        nfv = acc + self.agpr if self.agpr else self.vgpr
        d = [".p2align 6", f".amdhsa_kernel {self.name}",
             f"  .amdhsa_next_free_vgpr {nfv}",
             f"  .amdhsa_next_free_sgpr {self.sgpr}",
             f"  .amdhsa_accum_offset {acc}",
             "  .amdhsa_group_segment_fixed_size 0",
             "  .amdhsa_kernarg_size 104",
             "  .amdhsa_user_sgpr_count 2",
             "  .amdhsa_user_sgpr_kernarg_segment_ptr 1",
             "  .amdhsa_system_sgpr_workgroup_id_x 1"]
        if self.wg_y:
            d.append("  .amdhsa_system_sgpr_workgroup_id_y 1")
        d.append("  .amdhsa_float_denorm_mode_32 3")
        d.append(".end_amdhsa_kernel")
        return "\n".join(d) + "\n"


HEADER = """; Kernarg layout for this problem (104 bytes, ptrs only, base s[0:1]):
"""


def build_file(launches, kernels, single=None, extra_text=""):
    out = HEADER
    if single:
        k, g, b, lds = launches[0]
        out += f"; @launch grid=({g[0]},{g[1]},{g[2]}) block=({b[0]},{b[1]},{b[2]}) lds={lds}\n"
    else:
        for k, g, b, lds in launches:
            out += f"; @launch kernel={k} grid=({g[0]},{g[1]},{g[2]}) block=({b[0]},{b[1]},{b[2]}) lds={lds}\n"
    out += '.amdgcn_target "amdgcn-amd-amdhsa--gfx950"\n.text\n'
    for k in kernels:
        out += k.text()
    out += extra_text
    out += '.section .rodata,"a"\n'
    for k in kernels:
        out += k.descriptor()
    return out
```

```python
import sys
from asmgen import *

S, D, F = 2048, 640, 1728
W1T, W2T, XN, AT, BT, X1, H, X2, X3 = 0, 0x300000, 0x600000, 0x900000, 0xC00000, 0xF00000, 0x1200000, 0x1A00000, 0x1D00000
ARG = dict(x=0, sre=8, sim=16, hre=24, him=32, bx=40, w1=48, b1=56, w2=64, b2=72, out=80, dbg=88, ws=96)
SZ = dict(x=S*D*2, sre=S*S*2, sim=S*S*2, hre=D*D*2, him=D*D*2, w1=D*F*2, b1=F*2, w2=D*F*2, b2=D*2, out=S*D*2)


def mk_srd(k, d, tmp, buf, nbytes=None):
    if isinstance(buf, tuple):
        k(f"s_load_dwordx2 {s(tmp,2)}, s[0:1], {ARG['ws']}")
        k("s_waitcnt lgkmcnt(0)")
        k.srd_off(d, tmp, buf[1], buf[2])
    else:
        k(f"s_load_dwordx2 {s(tmp,2)}, s[0:1], {ARG[buf]}")
        k("s_waitcnt lgkmcnt(0)")
        k.srd(d, tmp, SZ[buf])


def divmod_s(k, q, rem, x, c):
    magic = (2**32 + c - 1) // c
    k(f"s_mov_b32 {s(rem)}, {magic}")
    k(f"s_mul_hi_u32 {s(q)}, {s(x)}, {s(rem)}")
    k(f"s_mul_i32 {s(rem)}, {s(q)}, {c}")
    k(f"s_sub_u32 {s(rem)}, {s(x)}, {s(rem)}")


def round_pair(k, x0, x1, t):
    k(f"v_cvt_pk_bf16_f32 {v(t)}, {v(x0)}, {v(x1)}")
    k(f"v_lshlrev_b32 {v(x0)}, 16, {v(t)}")
    k(f"v_and_b32 {v(x1)}, 0xffff0000, {v(t)}")


def transpose_kernel(name, src, dst_off, R, C):
    k = Kernel(name, vgpr=16, sgpr=32)
    n = R * C
    nwg = n // 256
    k(f"s_cmp_ge_u32 s2, {nwg}")
    k(f"s_cbranch_scc1 L_{name}_end")
    mk_srd(k, 8, 4, src)
    mk_srd(k, 12, 4, ('ws', dst_off, n * 2))
    k("s_lshl_b32 s3, s2, 8")
    k("v_add_u32 v1, s3, v0")
    magic = (2**32 + C - 1) // C
    k(f"s_mov_b32 s16, {magic}")
    k("v_mul_hi_u32 v2, v1, s16")
    k(f"v_mul_u32_u24 v3, {C}, v2")
    k("v_sub_u32 v3, v1, v3")
    k(f"v_mul_u32_u24 v4, {R}, v3")
    k("v_add_lshl_u32 v4, v4, v2, 1")
    k("v_lshlrev_b32 v1, 1, v1")
    k("buffer_load_ushort v5, v1, s[8:11], 0 offen")
    k("s_waitcnt vmcnt(0)")
    k("buffer_store_short v5, v4, s[12:15], 0 offen")
    k(f"L_{name}_end:")
    k("s_endpgm")
    return k, (name, (nwg, 1, 1), (256, 1, 1), 0)


def wave_sum(k, x, t, addr):
    for sh in (1, 2, 4, 8, 16, 32):
        k(f"v_xor_b32 {v(addr)}, {sh}, v0")
        k(f"v_lshlrev_b32 {v(addr)}, 2, {v(addr)}")
        k(f"ds_bpermute_b32 {v(t)}, {v(addr)}, {v(x)}")
        k("s_waitcnt lgkmcnt(0)")
        k(f"v_add_f32 {v(x)}, {v(x)}, {v(t)}")


def ln_kernel(name, src, dst_off):
    k = Kernel(name, vgpr=32, sgpr=32)
    k(f"s_cmp_ge_u32 s2, {S}")
    k(f"s_cbranch_scc1 L_{name}_end")
    mk_srd(k, 8, 4, src)
    mk_srd(k, 12, 4, ('ws', dst_off, S * D * 2))
    k(f"s_mul_i32 s3, s2, {D*2}")
    k("v_lshl_add_u32 v1, v0, 2, s3")
    for j in range(5):
        k(f"buffer_load_dword {v(2+j)}, v1, s[8:11], 0 offen offset:{j*256}")
    k("s_waitcnt vmcnt(0)")
    for j in range(5):
        k(f"v_lshlrev_b32 {v(8+2*j)}, 16, {v(2+j)}")
        k(f"v_and_b32 {v(9+2*j)}, 0xffff0000, {v(2+j)}")
    k("v_mov_b32 v20, 0")
    for j in range(10):
        k(f"v_add_f32 v20, v20, {v(8+j)}")
    wave_sum(k, 20, 21, 22)
    k(f"v_mul_f32 v20, {1.0/D!r}, v20")
    k("v_mov_b32 v23, 0")
    for j in range(10):
        k(f"v_sub_f32 v21, {v(8+j)}, v20")
        k("v_fmac_f32 v23, v21, v21")
    wave_sum(k, 23, 21, 22)
    k(f"v_mul_f32 v23, {1.0/D!r}, v23")
    round_pair(k, 20, 23, 21)
    k("v_add_f32 v23, 0x3727c5ac, v23")
    round_pair(k, 23, 24, 21)
    k("v_sqrt_f32 v23, v23")
    round_pair(k, 23, 24, 21)
    k("v_rcp_f32 v23, v23")
    for j in range(5):
        k(f"v_sub_f32 {v(8+2*j)}, {v(8+2*j)}, v20")
        k(f"v_sub_f32 {v(9+2*j)}, {v(9+2*j)}, v20")
        round_pair(k, 8+2*j, 9+2*j, 21)
        k(f"v_mul_f32 {v(8+2*j)}, {v(8+2*j)}, v23")
        k(f"v_mul_f32 {v(9+2*j)}, {v(9+2*j)}, v23")
        k(f"v_cvt_pk_bf16_f32 {v(2+j)}, {v(8+2*j)}, {v(9+2*j)}")
        k(f"buffer_store_dword {v(2+j)}, v1, s[12:15], 0 offen offset:{j*256}")
    k(f"L_{name}_end:")
    k("s_endpgm")
    return k, (name, (S, 1, 1), (64, 1, 1), 0)


def gemm_kernel(name, pairs, M, N, K, out, mode, resid=None, bias=None, scale=None):
    k = Kernel(name, vgpr=96, sgpr=48)
    nm, nn = M // 32, N // 32
    k(f"s_cmp_ge_u32 s2, {nm*nn}")
    k(f"s_cbranch_scc1 L_{name}_end")
    divmod_s(k, 6, 7, 2, nm)
    k("v_and_b32 v1, 31, v0")
    k("v_lshrrev_b32 v2, 5, v0")
    k("s_lshl_b32 s7, s7, 5")
    k("s_lshl_b32 s6, s6, 5")
    mk_srd(k, 16, 4, out)
    if resid is not None:
        mk_srd(k, 20, 4, resid)
    if bias is not None:
        mk_srd(k, 24, 4, bias)
    for pi, (P, Q) in enumerate(pairs):
        acc = 32 + 16 * pi
        mk_srd(k, 8, 4, P)
        mk_srd(k, 12, 4, Q)
        k("v_add_u32 v3, s7, v1")
        k(f"v_mul_u32_u24 v3, {K*2}, v3")
        k("v_lshl_add_u32 v3, v2, 4, v3")
        k("v_add_u32 v4, s6, v1")
        k(f"v_mul_u32_u24 v4, {K*2}, v4")
        k("v_lshl_add_u32 v4, v2, 4, v4")
        for i in range(16):
            k(f"v_mov_b32 {v(acc+i)}, 0")
        k("s_mov_b32 s3, 0")
        lab = k.label("k")
        k(f"{lab}:")
        for j in range(2):
            k(f"buffer_load_dwordx4 {v(8+8*j,4)}, v3, s[8:11], s3 offen offset:{32*j}")
            k(f"buffer_load_dwordx4 {v(12+8*j,4)}, v4, s[12:15], s3 offen offset:{32*j}")
        for j in range(2):
            k(f"s_waitcnt vmcnt({2-2*j})")
            k(f"v_mfma_f32_32x32x16_bf16 {v(acc,16)}, {v(8+8*j,4)}, {v(12+8*j,4)}, {v(acc,16)}")
        k("s_add_u32 s3, s3, 64")
        k(f"s_cmp_lt_u32 s3, {K*2}")
        k(f"s_cbranch_scc1 {lab}")
    k("v_add_u32 v4, s6, v1")
    k(f"v_mul_u32_u24 v4, {M*2}, v4")
    k("v_lshl_add_u32 v5, v2, 2, s7")
    k("v_lshlrev_b32 v5, 1, v5")
    k("v_add_u32 v4, v4, v5")
    for g in range(4):
        c = 32 + 4 * g
        if resid is not None:
            k(f"buffer_load_dwordx2 v[8:9], v4, s[20:23], 0 offen offset:{16*g}")
        if bias is not None:
            k(f"buffer_load_dwordx2 v[10:11], v5, s[24:27], 0 offen offset:{16*g}")
        k("s_waitcnt vmcnt(0)")
        if resid is not None:
            for j in range(2):
                k(f"v_lshlrev_b32 {v(12+2*j)}, 16, {v(8+j)}")
                k(f"v_and_b32 {v(13+2*j)}, 0xffff0000, {v(8+j)}")
        if bias is not None:
            for j in range(2):
                k(f"v_lshlrev_b32 {v(16+2*j)}, 16, {v(10+j)}")
                k(f"v_and_b32 {v(17+2*j)}, 0xffff0000, {v(10+j)}")
        if mode != 'plain':
            round_pair(k, c, c+1, 20)
            round_pair(k, c+2, c+3, 20)
        if mode == 'seq':
            round_pair(k, c+16, c+17, 20)
            round_pair(k, c+18, c+19, 20)
            for j in range(4):
                k(f"v_sub_f32 {v(c+j)}, {v(c+j)}, {v(c+16+j)}")
        if bias is not None:
            for j in range(4):
                k(f"v_add_f32 {v(c+j)}, {v(c+j)}, {v(16+j)}")
        if mode != 'plain':
            round_pair(k, c, c+1, 20)
            round_pair(k, c+2, c+3, 20)
        if mode == 'ffn1':
            for j in range(4):
                k(f"v_max_f32 {v(c+j)}, 0, {v(c+j)}")
                k(f"v_mul_f32 {v(c+j)}, {v(c+j)}, {v(c+j)}")
        if resid is not None:
            for j in range(4):
                k(f"v_add_f32 {v(c+j)}, {v(c+j)}, {v(12+j)}")
        if scale is not None:
            for j in range(4):
                k(f"v_mul_f32 {v(c+j)}, {scale!r}, {v(c+j)}")
        k(f"v_cvt_pk_bf16_f32 v22, {v(c)}, {v(c+1)}")
        k(f"v_cvt_pk_bf16_f32 v23, {v(c+2)}, {v(c+3)}")
        k(f"buffer_store_dwordx2 v[22:23], v4, s[16:19], 0 offen offset:{16*g}")
    k(f"L_{name}_end:")
    k("s_endpgm")
    return k, (name, (nm*nn, 1, 1), (64, 1, 1), 0)


def nop_kernel(name, nwg):
    k = Kernel(name, vgpr=8, sgpr=16)
    k("s_endpgm")
    return k, (name, (nwg, 1, 1), (256, 1, 1), 0)


def build(scale=None, nops=0):
    ks = []
    ws = lambda off, n: ('ws', off, n)
    ks.append(transpose_kernel("tw1_kernel", 'w1', W1T, D, F))
    ks.append(transpose_kernel("tw2_kernel", 'w2', W2T, F, D))
    xin = 'x'
    SD = S*D*2
    for L in range(2):
        x1 = ws(X1 if L == 0 else X3, SD)
        x2 = ws(X2, SD) if L == 0 else 'out'
        ks.append(ln_kernel(f"lna{L}_kernel", xin, XN))
        ks.append(gemm_kernel(f"ha{L}_kernel", [(ws(XN, SD), 'hre')], S, D, D, ws(AT, SD), 'plain'))
        ks.append(gemm_kernel(f"hb{L}_kernel", [(ws(XN, SD), 'him')], S, D, D, ws(BT, SD), 'plain'))
        ks.append(gemm_kernel(f"sq{L}_kernel", [(ws(AT, SD), 'sre'), (ws(BT, SD), 'sim')], D, S, S, x1, 'seq', resid=xin))
        ks.append(ln_kernel(f"lnb{L}_kernel", x1, XN))
        ks.append(gemm_kernel(f"f1{L}_kernel", [(ws(W1T, D*F*2), ws(XN, SD))], F, S, D, ws(H, S*F*2), 'ffn1', bias='b1'))
        ks.append(gemm_kernel(f"f2{L}_kernel", [(ws(W2T, D*F*2), ws(H, S*F*2))], D, S, F, x2, 'ffn2', resid=x1, bias='b2',
                              scale=scale if L == 1 else None))
        xin = x2
    kernels = [k for k, _ in ks]
    launches = [l for _, l in ks]
    if nops:
        k, l = nop_kernel("nop_kernel", 256)
        kernels.append(k)
        launches += [l] * nops
    return build_file(launches, kernels)


if __name__ == "__main__":
    open("base0.s", "w").write(build())
    open("base_n20.s", "w").write(build(nops=20))
    open("base_s1.s", "w").write(build(scale=1.01))
    open("base_s2.s", "w").write(build(scale=1.02))
    open("base_s5.s", "w").write(build(scale=1.05))
```
